```python
import torch

def _softmax(x, axis=-1):
    return torch.softmax(x, dim=axis)

def _gelu(x):
    return torch.nn.functional.gelu(x, approximate='tanh')

def _silu(x):
    return torch.nn.functional.silu(x)

def _sigmoid(x):
    return torch.sigmoid(x)

def _layernorm(x, axis=-1, eps=1e-05):
    m = x.mean(dim=axis, keepdim=True)
    v = x.var(dim=axis, keepdim=True, unbiased=False)
    return (x - m) / torch.sqrt(v + eps)

def _scatter_add(tgt, idx, src, axis=0):
    return tgt.clone().index_add_(axis, idx, src)

def _segment_sum(src, seg, n):
    out = torch.zeros((n,) + src.shape[1:], dtype=src.dtype)
    return out.index_add_(0, seg, src)

def _pad(x, pw):
    flat = tuple((v for pair in reversed(pw) for v in pair))
    return torch.nn.functional.pad(x, flat)
kernel_name = 'adaLN_cond__ssm_conv_h3__glu_gated_swiglu__prompt'

def setup_inputs():

    _w = lambda a: (lambda t: t.to(torch.bfloat16) if t.is_floating_point() else t)(torch.as_tensor(a))

    def _A_setup():
        B, S, D = (1, 2048, 576)
        ks = 4
        return {'q': _w((lambda *s: torch.randn(*s, dtype=torch.bfloat16) * 0.05)(B, S, D)), 'k': _w((lambda *s: torch.randn(*s, dtype=torch.bfloat16) * 0.8)(B, S, D)), 'v': _w((lambda *s: torch.randn(*s, dtype=torch.bfloat16) * 0.8)(B, S, D)), 'shift_k': _w((lambda *s: torch.randn(*s, dtype=torch.bfloat16) * 0.8)(D, ks) * 0.5), 'ssm_k': _w((lambda *s: torch.randn(*s, dtype=torch.bfloat16) * 0.8)(D, S) * (1.0 / S ** 0.5)), 'ssm_D': _w((lambda *s: torch.randn(*s, dtype=torch.bfloat16) * 0.8)(D))}
    _A_in = _A_setup()

    def _B_setup():
        B, S, D, F = (1, 2048, 576, 4608)
        return {'x': _w((lambda *s: torch.randn(*s, dtype=torch.bfloat16) * 0.05)(B, S, D)), 'w1': _w((lambda *s: torch.randn(*s, dtype=torch.bfloat16) * 0.8)(D, F) * (2.0 / D) ** 0.5), 'w3': _w((lambda *s: torch.randn(*s, dtype=torch.bfloat16) * 0.8)(D, F) * (2.0 / D) ** 0.5), 'w2': _w((lambda *s: torch.randn(*s, dtype=torch.bfloat16) * 0.8)(F, D) * (2.0 / F) ** 0.5)}
    _B_in = _B_setup()
    return {'A_q': _A_in['q'], 'A_k': _A_in['k'], 'A_v': _A_in['v'], 'A_shift_k': _A_in['shift_k'], 'A_ssm_k': _A_in['ssm_k'], 'A_ssm_D': _A_in['ssm_D'], 'B_x': _B_in['x'], 'B_w1': _B_in['w1'], 'B_w3': _B_in['w3'], 'B_w2': _B_in['w2'], 'c': _w((lambda *s: torch.randn(*s, dtype=torch.bfloat16) * 0.2)(1, 576) * 8.0), 'w_mod': _w((lambda *s: torch.randn(*s, dtype=torch.bfloat16) * 0.2)(576, 6 * 576) * 576 ** (-0.5) * 8.0)}

def reference(A_q, A_k, A_v, A_shift_k, A_ssm_k, A_ssm_D, B_x, B_w1, B_w3, B_w2, c, w_mod):

    def _A_ref(q, k, v, shift_k, ssm_k, ssm_D):
        B, S, D = q.shape
        ks = shift_k.shape[-1]
        k_pad = _pad(k, ((0, 0), (ks - 1, 0), (0, 0)))
        k_shift = torch.zeros_like(k)
        for t in range(ks):
            k_shift = k_shift + k_pad[:, t:t + S, :] * shift_k[:, ks - 1 - t][None, None, :]
        kv = k_shift * v
        L = 2 * S
        kv_pad = _pad(kv, ((0, 0), (0, S), (0, 0)))
        kf_pad = _pad(ssm_k, ((0, 0), (0, S)))
        kv_f = (lambda x, axes=(-2, -1): torch.fft.rfft2(x.float(), dim=axes))(kv_pad[:, None, :, :], axes=(1, 2))
        kf_f = (lambda x, axes=(-2, -1): torch.fft.rfft2(x.float(), dim=axes))(kf_pad[:, None, :], axes=(1, 2))
        kf_f = (lambda x, *d: x.permute(*d))(kf_f, 1, 2, 0)
        y_f = kv_f * kf_f[None, :, :, :]
        y = (lambda x, s, axes=(-2, -1): torch.fft.irfft2(x, s=s, dim=axes).to(torch.bfloat16))(y_f, (1, L), axes=(1, 2))[:, 0, :S, :]
        y = y + kv * ssm_D[None, None, :]
        return q * y

    def _B_ref(x, w1, w3, w2):
        gate = torch.einsum('bsd,df->bsf', x, w1)
        up = torch.einsum('bsd,df->bsf', x, w3)
        h = _silu(gate) * up
        out = torch.einsum('bsf,fd->bsd', h, w2)
        return out
    x = A_q
    mod = (_silu(c) @ w_mod).reshape(c.shape[0], 6, 1, -1)
    sa, ca, ga, sb, cb, gb = (mod[:, 0].clone(), mod[:, 1].clone(), mod[:, 2].clone(), mod[:, 3].clone(), mod[:, 4].clone(), mod[:, 5].clone())
    h = _layernorm(x, axis=-1) * (1 + ca) + sa
    x = x + ga * _A_ref(h, A_k, A_v, A_shift_k, A_ssm_k, A_ssm_D)
    h = _layernorm(x, axis=-1) * (1 + cb) + sb
    x = x + gb * _B_ref(h, B_w1, B_w3, B_w2)
    return x
```

```python
import hazard

S, D, F = 2048, 576, 4608
NB = S * D * 2

KA_Q, KA_K, KA_V, KA_SHK, KA_SSMK, KA_SSMD, KA_BX, KA_W1, KA_W3, KA_W2, KA_C, KA_WMOD, KA_OUT, KA_DBG, KA_WS = [8 * i for i in range(15)]

WS_XR = 0x000000
WS_Z = 0x240000
WS_X1 = 0x480000
WS_H2 = 0x6C0000
WS_MOD = 0x900000
WS_HH = 0x910000
HH_BYTES = 128 * 144 * 1024
WS_END = WS_HH + HH_BYTES


import os
STAMPS = bool(os.environ.get("STAMPS"))
STAMP_S = 76
WS_STAMP = 0x4000000


class K:
    def __init__(self, name):
        self.name = name
        self.lines = []

    def __call__(self, text):
        for ln in text.split("\n"):
            ln = ln.strip()
            if ln:
                self.lines.append(ln if ln.endswith(":") else "  " + ln)

    def label(self, l):
        self.lines.append("%s_%s:" % (l, self.name))

    def L(self, l):
        return "%s_%s" % (l, self.name)

    def srd(self, s, base, nbytes, add=0):
        if add:
            self("s_add_u32 s%d, s%d, 0x%x" % (s, base, add))
            self("s_addc_u32 s%d, s%d, 0" % (s + 1, base + 1))
        else:
            self("s_mov_b32 s%d, s%d" % (s, base))
            self("s_mov_b32 s%d, s%d" % (s + 1, base + 1))
        self("s_mov_b32 s%d, 0x%x" % (s + 2, nbytes))
        self("s_mov_b32 s%d, 0x20000" % (s + 3))

    def stamp(self, i, real=False):
        if not STAMPS:
            return
        self("s_waitcnt lgkmcnt(0)")
        self("%s s[%d:%d]" % ("s_memrealtime" if real else "s_memtime", STAMP_S + 2 * i, STAMP_S + 2 * i + 1))
        self("s_waitcnt lgkmcnt(0)")
        self.nstamp = max(getattr(self, "nstamp", 0), i + 1)

    def stamps_out(self, kidx, vtmp):
        if not STAMPS:
            return
        self("s_waitcnt vmcnt(0) lgkmcnt(0)")
        self("s_mov_b64 exec, 1")
        self("s_load_dwordx2 s[%d:%d], s[0:1], %d" % (STAMP_S - 4, STAMP_S - 3, KA_WS))
        self("v_lshrrev_b32 v%d, 6, v%d" % (vtmp, vtmp + 2))
        self("s_lshl_b32 s%d, s2, 4" % (STAMP_S - 2))
        self("v_add_u32 v%d, s%d, v%d" % (vtmp, STAMP_S - 2, vtmp))
        self("v_lshlrev_b32 v%d, 6, v%d" % (vtmp, vtmp))
        self("v_add_u32 v%d, 0x%x, v%d" % (vtmp, WS_STAMP + (kidx << 20), vtmp))
        self("s_waitcnt lgkmcnt(0)")
        for i in range(self.nstamp):
            self("v_mov_b32 v%d, s%d" % (vtmp + 1, STAMP_S + 2 * i))
            self("global_store_dword v%d, v%d, s[%d:%d] offset:%d" % (vtmp, vtmp + 1, STAMP_S - 4, STAMP_S - 3, 4 * i))
        self("s_waitcnt vmcnt(0)")

    def keep_tid(self, v):
        if STAMPS:
            self("v_mov_b32 v%d, v0" % v)

    def text(self, vgpr, sgpr, accum=None, report=None):
        if STAMPS:
            sgpr = 102
        body = hazard.fix(self.lines, report=report)
        s = ".globl %s\n.p2align 8\n.type %s,@function\n%s:\n" % (self.name, self.name, self.name)
        s += "\n".join(body) + "\n"
        if accum is None:
            accum = (vgpr + 3) // 4 * 4
        s += '.section .rodata,"a"\n.p2align 6\n.amdhsa_kernel %s\n' % self.name
        s += "  .amdhsa_next_free_vgpr %d\n  .amdhsa_next_free_sgpr %d\n  .amdhsa_accum_offset %d\n" % (vgpr, sgpr, accum)
        s += "  .amdhsa_group_segment_fixed_size 0\n  .amdhsa_kernarg_size 120\n"
        s += "  .amdhsa_user_sgpr_count 2\n  .amdhsa_user_sgpr_kernarg_segment_ptr 1\n"
        s += "  .amdhsa_system_sgpr_workgroup_id_x 1\n  .amdhsa_float_denorm_mode_32 3\n"
        s += ".end_amdhsa_kernel\n.text\n"
        return s


def lo(dst, src):
    return "v_lshlrev_b32 v%d, 16, v%d" % (dst, src)


def hi(dst, src, mask="s_hi"):
    return "v_and_b32 v%d, 0xffff0000, v%d" % (dst, src)
```

```python
import re

TRANS = ("v_exp_f32", "v_log_f32", "v_rcp_f32", "v_rsq_f32", "v_sqrt_f32", "v_sin_f32", "v_cos_f32", "v_rcp_iflag_f32")


def regs_of(op):
    op = op.strip()
    m = re.fullmatch(r"(-|abs\(|\|)?([vas])(\d+)\)?\|?", op)
    if m:
        return [(m.group(2), int(m.group(3)))]
    m = re.fullmatch(r"([vas])\[(\d+):(\d+)\]", op)
    if m:
        return [(m.group(1), i) for i in range(int(m.group(2)), int(m.group(3)) + 1)]
    if op == "vcc":
        return [("s", "vcc")]
    if op == "exec":
        return [("s", "exec")]
    if op == "m0":
        return [("s", "m0")]
    return []


def norm(r):
    return r


class Ins:
    def __init__(self, text):
        self.text = text
        t = text.split(";")[0].strip()
        self.is_label = t.endswith(":")
        self.empty = t == "" or t.startswith(".")
        self.dst, self.src = [], []
        self.kind = "none"
        self.passes = 0
        self.srcc = []
        self.srcab = []
        self.nop = 0
        self.dpp = False
        self.store_wide = False
        self.store_data = []
        self.lds_dma = False
        if self.is_label or self.empty:
            return
        parts = t.split(None, 1)
        self.mn = mn = parts[0]
        rest = parts[1] if len(parts) > 1 else ""
        ops = [o.strip() for o in re.split(r",(?![^\[]*\])", rest)] if rest else []
        mods = ""
        if ops:
            last = ops[-1].split()
            if len(last) > 1:
                ops[-1] = last[0]
                mods = " ".join(last[1:])
        self.ops, self.mods = ops, mods
        R = lambda i: regs_of(ops[i]) if i < len(ops) else []
        base = re.sub(r"_(e32|e64|dpp|sdwa)$", "", mn)
        self.base = base
        if mn.startswith("v_mfma"):
            self.kind = "mfma"
            self.dst = R(0)
            self.srcab = R(1) + R(2)
            self.srcc = R(3)
            self.src = self.srcab + self.srcc
            self.passes = 8 if "32x32" in mn else 4
        elif mn.startswith("v_"):
            self.kind = "valu"
            self.dpp = ("quad_perm" in t or "row_" in t or "wave_" in t)
            if base.startswith("v_cmp"):
                self.dst = R(0); self.src = R(1) + R(2)
            elif base in ("v_add_co_u32", "v_sub_co_u32"):
                self.dst = R(0) + R(1); self.src = R(2) + R(3)
            elif base in ("v_addc_co_u32", "v_subb_co_u32"):
                self.dst = R(0) + R(1); self.src = R(2) + R(3) + R(4)
            elif base.startswith("v_permlane"):
                self.dst = R(0) + R(1); self.src = R(0) + R(1)
            elif base == "v_cndmask_b32":
                self.dst = R(0); self.src = R(1) + R(2) + (R(3) if len(ops) > 3 else [("s", "vcc")])
            else:
                self.dst = R(0)
                self.src = [r for i in range(1, len(ops)) for r in R(i)]
                if base in ("v_fmac_f32", "v_dot2c_f32_bf16", "v_pk_fmac_f16") or self.dpp and base == "v_mov_b32":
                    self.src += R(0)
            self.trans = base in TRANS
        elif mn.startswith("ds_"):
            self.kind = "ds"
            if mn.startswith("ds_read") or mn.startswith("ds_bpermute") or mn.startswith("ds_swizzle") or mn.startswith("ds_permute"):
                self.dst = R(0); self.src = [r for i in range(1, len(ops)) for r in R(i)]
                if "d16" in mn:
                    self.src += R(0)
            else:
                self.src = [r for i in range(len(ops)) for r in R(i)]
        elif mn.startswith("buffer_") or mn.startswith("global_"):
            self.kind = "vmem"
            lds = "lds" in mods.split() or "_lds_" in mn
            self.lds_dma = lds
            allr = [r for i in range(len(ops)) for r in R(i)]
            if lds:
                self.src = allr + [("s", "m0")]
            elif "_load" in mn:
                self.dst = R(0); self.src = [r for i in range(1, len(ops)) for r in R(i)]
            elif mn.startswith("buffer_"):
                self.src = allr
                self.store_data = R(0)
            else:
                self.src = allr
                self.store_data = R(1)
            if self.store_data and ("x3" in mn or "x4" in mn):
                self.store_wide = True
        elif mn.startswith("s_"):
            self.kind = "salu"
            if mn == "s_nop":
                self.nop = int(ops[0], 0) + 1
            elif mn.startswith("s_cmp") or mn.startswith("s_waitcnt") or mn.startswith("s_cbranch") or mn in (
                    "s_barrier", "s_branch", "s_endpgm", "s_setprio", "s_sleep"):
                self.src = [r for i in range(len(ops)) for r in R(i)]
            else:
                self.dst = R(0); self.src = [r for i in range(1, len(ops)) for r in R(i)]
                if "saveexec" in mn:
                    self.dst += [("s", "exec")]

    @property
    def states(self):
        if self.is_label or self.empty:
            return 0
        return self.nop if self.nop else 1


def required(prod, cons):
    need = 0
    pd, cs, cd = set(prod.dst), set(cons.src), set(cons.dst)
    if prod.kind == "valu":
        sg = {r for r in pd if r[0] == "s"}
        vg = {r for r in pd if r[0] != "s"}
        if sg & cs:
            if cons.kind == "vmem":
                need = max(need, 5)
            elif cons.kind == "valu":
                need = max(need, 4 if cons.base in ("v_readlane_b32", "v_writelane_b32") else 2)
            elif cons.kind == "salu":
                need = max(need, 2)
        if vg & cs:
            if cons.kind == "mfma":
                need = max(need, 2)
            elif cons.kind == "valu":
                if cons.base in ("v_readfirstlane_b32", "v_readlane_b32"):
                    need = max(need, 1)
                if cons.dpp or cons.base.startswith("v_permlane"):
                    need = max(need, 2)
                if prod.trans and not cons.trans:
                    need = max(need, 1)
                if "sdwa" in prod.mn or "op_sel" in prod.mods:
                    need = max(need, 1)
        if ("s", "exec") in pd:
            need = max(need, 5)
    if prod.kind == "mfma":
        raw = {4: 8, 8: 12}[prod.passes]
        if cons.kind == "mfma":
            if pd & set(cons.srcab):
                need = max(need, raw)
            if pd & set(cons.srcc):
                if not (prod.dst == cons.srcc and prod.passes == cons.passes):
                    need = max(need, {4: 6, 8: 10}[prod.passes])
            elif pd & cd:
                need = max(need, {4: 6, 8: 10}[prod.passes])
        elif cons.kind in ("valu", "vmem", "ds"):
            if pd & (cs | cd):
                need = max(need, raw)
        if cons.kind == "valu" and set(prod.srcc) & cd:
            need = max(need, {4: 3, 8: 7}[prod.passes])
    if prod.kind == "vmem" and prod.store_wide:
        if set(prod.store_data) & cd:
            need = max(need, 2)
    if prod.kind == "salu" and ("s", "m0") in pd and cons.kind == "vmem" and cons.lds_dma:
        need = max(need, 1)
    return need


def fix(lines, window=24, report=None):
    out = []
    hist = []
    for text in lines:
        ins = Ins(text)
        if ins.is_label or ins.empty:
            out.append(text)
            continue
        dist = 0
        need_extra = 0
        for p in reversed(hist):
            n = required(p, ins)
            if n > dist:
                need_extra = max(need_extra, n - dist)
            dist += p.states
            if dist >= window:
                break
        if need_extra:
            if report is not None:
                report.append((text.strip(), need_extra))
            k = need_extra
            while k > 0:
                c = min(k, 16)
                nop = "  s_nop %d" % (c - 1)
                out.append(nop)
                hist.append(Ins(nop))
                k -= c
        out.append(text)
        hist.append(ins)
        if len(hist) > 64:
            hist = hist[-48:]
    return out
```

```python
import sys, importlib
sys.path.insert(0, "dev")
import common

HEADER = open("adaLN_cond__ssm_conv_h3__glu_gated_swiglu__prompt.s.ref").read()


def kernarg_comment():
    out = []
    for ln in HEADER.split("\n"):
        if ln.startswith("; Override launch geometry"):
            break
        out.append(ln)
    return "\n".join(out) + "\n"


def generate(mods, path):
    texts, launches = [], []
    for m in mods:
        mod = importlib.import_module(m)
        importlib.reload(mod)
        t, l = mod.build()
        texts.append(t); launches.append(l)
    s = kernarg_comment()
    for name, wg, thr, lds in launches:
        s += "; @launch kernel=%s grid=(%d,1,1) block=(%d,1,1) lds=%d\n" % (name, wg, thr, lds)
    s += '.amdgcn_target "amdgcn-amd-amdhsa--gfx950"\n.text\n'
    s += "".join(texts)
    open(path, "w").write(s)
    return launches


if __name__ == "__main__":
    mods = sys.argv[2:] or ["k1", "k2", "k3", "g1", "g2", "r3"]
    path = sys.argv[1] if len(sys.argv) > 1 else "out.s"
    print(generate(mods, path))
```

```python
import hazard

S, D, F = 2048, 576, 4608
NB = S * D * 2

KA_Q, KA_K, KA_V, KA_SHK, KA_SSMK, KA_SSMD, KA_BX, KA_W1, KA_W3, KA_W2, KA_C, KA_WMOD, KA_OUT, KA_DBG, KA_WS = [8 * i for i in range(15)]

WS_XR = 0x000000
WS_Z = 0x240000
WS_X1 = 0x480000
WS_H2 = 0x6C0000
WS_MOD = 0x900000
WS_HH = 0x910000
HH_BYTES = 128 * 144 * 1024
WS_P = WS_HH + HH_BYTES
WS_END = WS_P + 4 * NB


import os
STAMPS = bool(os.environ.get("STAMPS"))
STAMPS_REAL = os.environ.get("STAMPS") == "real"
STAMP_S = 72
WS_STAMP = 0x4000000


class K:
    def __init__(self, name):
        self.name = name
        self.lines = []

    def __call__(self, text):
        for ln in text.split("\n"):
            ln = ln.strip()
            if ln:
                self.lines.append(ln if ln.endswith(":") else "  " + ln)

    def label(self, l):
        self.lines.append("%s_%s:" % (l, self.name))

    def L(self, l):
        return "%s_%s" % (l, self.name)

    def srd(self, s, base, nbytes, add=0):
        if add:
            self("s_add_u32 s%d, s%d, 0x%x" % (s, base, add))
            self("s_addc_u32 s%d, s%d, 0" % (s + 1, base + 1))
        else:
            self("s_mov_b32 s%d, s%d" % (s, base))
            self("s_mov_b32 s%d, s%d" % (s + 1, base + 1))
        self("s_mov_b32 s%d, 0x%x" % (s + 2, nbytes))
        self("s_mov_b32 s%d, 0x20000" % (s + 3))

    def stamp(self, i, real=False):
        if not STAMPS:
            return
        self("s_waitcnt lgkmcnt(0)")
        self("%s s[%d:%d]" % ("s_memrealtime" if (real or STAMPS_REAL) else "s_memtime", STAMP_S + 2 * i, STAMP_S + 2 * i + 1))
        self("s_waitcnt lgkmcnt(0)")
        self.nstamp = max(getattr(self, "nstamp", 0), i + 1)

    def stamps_out(self, kidx, vtmp):
        if not STAMPS:
            return
        self("s_waitcnt vmcnt(0) lgkmcnt(0)")
        self("s_mov_b64 exec, 1")
        self("s_load_dwordx2 s[%d:%d], s[0:1], %d" % (STAMP_S - 4, STAMP_S - 3, KA_WS))
        self("v_lshrrev_b32 v%d, 6, v%d" % (vtmp, vtmp + 2))
        self("s_lshl_b32 s%d, s2, 4" % (STAMP_S - 2))
        self("v_add_u32 v%d, s%d, v%d" % (vtmp, STAMP_S - 2, vtmp))
        self("v_lshlrev_b32 v%d, 6, v%d" % (vtmp, vtmp))
        self("v_add_u32 v%d, 0x%x, v%d" % (vtmp, WS_STAMP + (kidx << 20), vtmp))
        self("s_waitcnt lgkmcnt(0)")
        for i in range(self.nstamp):
            self("v_mov_b32 v%d, s%d" % (vtmp + 1, STAMP_S + 2 * i))
            self("global_store_dword v%d, v%d, s[%d:%d] offset:%d" % (vtmp, vtmp + 1, STAMP_S - 4, STAMP_S - 3, 4 * i))
        self("s_waitcnt vmcnt(0)")

    def keep_tid(self, v):
        if STAMPS:
            self("v_mov_b32 v%d, v0" % v)

    def text(self, vgpr, sgpr, accum=None, report=None):
        if STAMPS:
            sgpr = 102
        body = hazard.fix(self.lines, report=report)
        s = ".globl %s\n.p2align 8\n.type %s,@function\n%s:\n" % (self.name, self.name, self.name)
        s += "\n".join(body) + "\n"
        if accum is None:
            accum = (vgpr + 3) // 4 * 4
        s += '.section .rodata,"a"\n.p2align 6\n.amdhsa_kernel %s\n' % self.name
        s += "  .amdhsa_next_free_vgpr %d\n  .amdhsa_next_free_sgpr %d\n  .amdhsa_accum_offset %d\n" % (vgpr, sgpr, accum)
        s += "  .amdhsa_group_segment_fixed_size 0\n  .amdhsa_kernarg_size 120\n"
        s += "  .amdhsa_user_sgpr_count 2\n  .amdhsa_user_sgpr_kernarg_segment_ptr 1\n"
        s += "  .amdhsa_system_sgpr_workgroup_id_x 1\n  .amdhsa_float_denorm_mode_32 3\n"
        s += ".end_amdhsa_kernel\n.text\n"
        return s


def lo(dst, src):
    return "v_lshlrev_b32 v%d, 16, v%d" % (dst, src)


def hi(dst, src, mask="s_hi"):
    return "v_and_b32 v%d, 0xffff0000, v%d" % (dst, src)
```

```python
import hazard

S, D, F = 2048, 576, 4608
NB = S * D * 2

KA_Q, KA_K, KA_V, KA_SHK, KA_SSMK, KA_SSMD, KA_BX, KA_W1, KA_W3, KA_W2, KA_C, KA_WMOD, KA_OUT, KA_DBG, KA_WS = [8 * i for i in range(15)]

WS_XR = 0x000000
WS_Z = 0x240000
WS_X1 = 0x480000
WS_H2 = 0x6C0000
WS_MOD = 0x900000
WS_HH = 0x910000
HH_BYTES = 128 * 144 * 1024
WS_P = WS_HH + HH_BYTES
WS_END = WS_P + 4 * NB


import os
DBGT = bool(os.environ.get("DBGT"))
STAMPS = bool(os.environ.get("STAMPS"))
STAMPS_REAL = os.environ.get("STAMPS") == "real"
STAMP_S = 72
WS_STAMP = 0x4000000


class K:
    def __init__(self, name):
        self.name = name
        self.lines = []

    def __call__(self, text):
        for ln in text.split("\n"):
            ln = ln.strip()
            if ln:
                self.lines.append(ln if ln.endswith(":") else "  " + ln)

    def label(self, l):
        self.lines.append("%s_%s:" % (l, self.name))

    def L(self, l):
        return "%s_%s" % (l, self.name)

    def srd(self, s, base, nbytes, add=0):
        if add:
            self("s_add_u32 s%d, s%d, 0x%x" % (s, base, add))
            self("s_addc_u32 s%d, s%d, 0" % (s + 1, base + 1))
        else:
            self("s_mov_b32 s%d, s%d" % (s, base))
            self("s_mov_b32 s%d, s%d" % (s + 1, base + 1))
        self("s_mov_b32 s%d, 0x%x" % (s + 2, nbytes))
        self("s_mov_b32 s%d, 0x20000" % (s + 3))

    def stamp(self, i, real=False):
        if not STAMPS:
            return
        self("s_waitcnt lgkmcnt(0)")
        self("%s s[%d:%d]" % ("s_memrealtime" if (real or STAMPS_REAL) else "s_memtime", STAMP_S + 2 * i, STAMP_S + 2 * i + 1))
        self("s_waitcnt lgkmcnt(0)")
        self.nstamp = max(getattr(self, "nstamp", 0), i + 1)

    def stamps_out(self, kidx, vtmp):
        if not STAMPS:
            return
        self("s_waitcnt vmcnt(0) lgkmcnt(0)")
        self("s_mov_b64 exec, 1")
        self("s_load_dwordx2 s[%d:%d], s[0:1], %d" % (STAMP_S - 4, STAMP_S - 3, KA_WS))
        self("v_lshrrev_b32 v%d, 6, v%d" % (vtmp, vtmp + 2))
        self("s_lshl_b32 s%d, s2, 4" % (STAMP_S - 2))
        self("v_add_u32 v%d, s%d, v%d" % (vtmp, STAMP_S - 2, vtmp))
        self("v_lshlrev_b32 v%d, 6, v%d" % (vtmp, vtmp))
        self("v_add_u32 v%d, 0x%x, v%d" % (vtmp, WS_STAMP + (kidx << 20), vtmp))
        self("s_waitcnt lgkmcnt(0)")
        for i in range(self.nstamp):
            self("v_mov_b32 v%d, s%d" % (vtmp + 1, STAMP_S + 2 * i))
            self("global_store_dword v%d, v%d, s[%d:%d] offset:%d" % (vtmp, vtmp + 1, STAMP_S - 4, STAMP_S - 3, 4 * i))
        self("s_waitcnt vmcnt(0)")

    def dbg_time(self, kidx, end, v):
        if not DBGT:
            return
        skip = "dbg%d%d" % (kidx, end)
        self("s_and_b32 s60, s2, 7")
        self("s_cmp_lg_u32 s60, 0")
        self("s_cbranch_scc1 " + self.L(skip))
        self("s_load_dwordx2 s[62:63], s[0:1], %d" % KA_DBG)
        self("s_memrealtime s[64:65]")
        self("s_waitcnt lgkmcnt(0)")
        self("s_sub_u32 s62, s62, %d" % (512 * kidx))
        self("s_subb_u32 s63, s63, 0")
        if not end:
            self("s_not_b32 s64, s64")
        self("v_mov_b32 v%d, s64" % v)
        self("v_mov_b32 v%d, %d" % (v + 1, 8 * kidx + 4 * end))
        self("s_mov_b64 s[66:67], exec")
        self("s_mov_b64 exec, 1")
        self("global_atomic_umax v%d, v%d, s[62:63]" % (v + 1, v))
        self("s_mov_b64 exec, s[66:67]")
        self.label(skip)

    def keep_tid(self, v):
        if STAMPS:
            self("v_mov_b32 v%d, v0" % v)

    def text(self, vgpr, sgpr, accum=None, report=None):
        if STAMPS or DBGT:
            sgpr = 102
        body = hazard.fix(self.lines, report=report)
        s = ".globl %s\n.p2align 8\n.type %s,@function\n%s:\n" % (self.name, self.name, self.name)
        s += "\n".join(body) + "\n"
        if accum is None:
            accum = (vgpr + 3) // 4 * 4
        s += '.section .rodata,"a"\n.p2align 6\n.amdhsa_kernel %s\n' % self.name
        s += "  .amdhsa_next_free_vgpr %d\n  .amdhsa_next_free_sgpr %d\n  .amdhsa_accum_offset %d\n" % (vgpr, sgpr, accum)
        s += "  .amdhsa_group_segment_fixed_size 0\n  .amdhsa_kernarg_size 120\n"
        s += "  .amdhsa_user_sgpr_count 2\n  .amdhsa_user_sgpr_kernarg_segment_ptr 1\n"
        s += "  .amdhsa_system_sgpr_workgroup_id_x 1\n  .amdhsa_float_denorm_mode_32 3\n"
        s += ".end_amdhsa_kernel\n.text\n"
        return s


def lo(dst, src):
    return "v_lshlrev_b32 v%d, 16, v%d" % (dst, src)


def hi(dst, src, mask="s_hi"):
    return "v_and_b32 v%d, 0xffff0000, v%d" % (dst, src)
```

```python
import sys, importlib
sys.path.insert(0, "dev")
import gen
def generate(seq, path):
    texts, launches, seen = [], [], {}
    for m in seq:
        if m not in seen:
            mod = importlib.import_module(m); importlib.reload(mod)
            t, l = mod.build(); texts.append(t); seen[m] = l
        launches.append(seen[m])
    s = gen.kernarg_comment()
    for name, wg, thr, lds in launches:
        s += "; @launch kernel=%s grid=(%d,1,1) block=(%d,1,1) lds=%d\n" % (name, wg, thr, lds)
    s += '.amdgcn_target "amdgcn-amd-amdhsa--gfx950"\n.text\n' + "".join(texts)
    open(path, "w").write(s)
if __name__ == "__main__":
    generate(sys.argv[2:], sys.argv[1])
```
